```python
import torch

def _softmax(x, axis=-1):
    return torch.softmax(x, dim=axis)

def _gelu(x):
    return torch.nn.functional.gelu(x, approximate='tanh')

def _silu(x):
    return torch.nn.functional.silu(x)

def _sigmoid(x):
    return torch.sigmoid(x)

def _layernorm(x, axis=-1, eps=1e-05):
    m = x.mean(dim=axis, keepdim=True)
    v = x.var(dim=axis, keepdim=True, unbiased=False)
    return (x - m) / torch.sqrt(v + eps)

def _scatter_add(tgt, idx, src, axis=0):
    return tgt.clone().index_add_(axis, idx, src)

def _segment_sum(src, seg, n):
    out = torch.zeros((n,) + src.shape[1:], dtype=src.dtype)
    return out.index_add_(0, seg, src)

def _pad(x, pw):
    flat = tuple((v for pair in reversed(pw) for v in pair))
    return torch.nn.functional.pad(x, flat)
kernel_name = 'recurrent_scan__sliding_local_dilated__mixer_gmlp__prompt'

def setup_inputs():

    _w = lambda a: (lambda t: t.to(torch.bfloat16) if t.is_floating_point() else t)(torch.as_tensor(a))

    def _A_setup():
        B, S, D = (1, 2048, 512)
        return {'x': _w((lambda *s: torch.randn(*s, dtype=torch.bfloat16) * 0.05)(B, S, D)), 'wqkv': _w((lambda *s: torch.randn(*s, dtype=torch.bfloat16) * 0.05)(D, 3 * D)), 'wo': _w((lambda *s: torch.randn(*s, dtype=torch.bfloat16) * 0.05)(D, D))}
    _A_in = _A_setup()

    def _B_setup():
        B, S, D, F = (1, 2048, 512, 1376)
        Fh = F // 2
        return {'x': _w((lambda *s: torch.randn(*s, dtype=torch.bfloat16) * 0.05)(B, S, D)), 'w_in': _w((lambda *s: torch.randn(*s, dtype=torch.bfloat16) * 0.4)(D, 2 * Fh)), 'w_sp': _w(0.01 * (lambda *s: torch.randn(*s, dtype=torch.bfloat16) * 0.4)(S, S)), 'b_sp': _w(1.0 + 0.01 * (lambda *s: torch.randn(*s, dtype=torch.bfloat16) * 0.05)(S)), 'w_out': _w((lambda *s: torch.randn(*s, dtype=torch.bfloat16) * 0.05)(Fh, D))}
    _B_in = _B_setup()
    return {'A_x': _A_in['x'], 'A_wqkv': _A_in['wqkv'], 'A_wo': _A_in['wo'], 'B_x': _B_in['x'], 'B_w_in': _B_in['w_in'], 'B_w_sp': _B_in['w_sp'], 'B_b_sp': _B_in['b_sp'], 'B_w_out': _B_in['w_out']}

def reference(A_x, A_wqkv, A_wo, B_x, B_w_in, B_w_sp, B_b_sp, B_w_out):

    def _A_ref(x, wqkv, wo):
        B, S, D = x.shape
        H = 32
        Dh = D // H
        W, dil = (8, 2)
        qkv = (lambda x, *d: x.permute(*d))((x @ wqkv).reshape(B, S, 3, H, Dh), 2, 0, 3, 1, 4)
        q, k, v = (qkv[0], qkv[1], qkv[2])
        scale = Dh ** (-0.5)
        pos = torch.arange(S)
        off = torch.arange(W) * dil
        idx = pos[:, None] - off[None, :]
        mask = idx >= 0
        idx_c = torch.where(mask, idx, 0).reshape(-1)
        kg = k[:, :, idx_c, :].reshape(B, H, S, W, Dh)
        vg = v[:, :, idx_c, :].reshape(B, H, S, W, Dh)
        logits = torch.einsum('bhsd,bhswd->bhsw', q, kg) * scale
        logits = torch.where(mask[None, None, :, :], logits, -1000000000.0)
        attn = _softmax(logits, axis=-1)
        o = torch.einsum('bhsw,bhswd->bhsd', attn, vg)
        return (lambda x, *d: x.permute(*d))(o, 0, 2, 1, 3).reshape(B, S, D) @ wo

    def _B_ref(x, w_in, w_sp, b_sp, w_out):
        B, S, D = x.shape
        F = w_in.shape[-1]
        Fh = F // 2
        z = _gelu(torch.einsum('bsd,df->bsf', x, w_in))
        z1 = z[..., :Fh].clone()
        z2 = _layernorm(z[..., Fh:], axis=-1)
        g = torch.einsum('ts,bsf->btf', w_sp, z2) + b_sp[None, :, None]
        return torch.einsum('bsf,fd->bsd', z1 * g, w_out)
    x = A_x
    xn = _layernorm(x, axis=-1)
    s = _A_ref(xn, A_wqkv, A_wo)
    g = _silu(_B_ref(xn, B_w_in, B_w_sp, B_b_sp, B_w_out))
    return x + s * g
```

```python
import re

TRANS = ("v_exp_f32", "v_log_f32", "v_rcp_f32", "v_rsq_f32", "v_sqrt_f32", "v_sin_f32", "v_cos_f32")

def regs_of(tok):
    tok = tok.strip()
    tok = re.sub(r"^-|^\||\|$|^abs\(|\)$|^neg\(", "", tok)
    m = re.fullmatch(r"([vas])(\d+)", tok)
    if m: return {(m.group(1), int(m.group(2)))}
    m = re.fullmatch(r"([vas])\[(\d+):(\d+)\]", tok)
    if m: return {(m.group(1), k) for k in range(int(m.group(2)), int(m.group(3)) + 1)}
    if tok == "vcc": return {("s", 106), ("s", 107)}
    if tok == "vcc_lo": return {("s", 106)}
    if tok == "vcc_hi": return {("s", 107)}
    if tok == "exec": return {("s", 126), ("s", 127)}
    if tok == "m0": return {("s", 124)}
    return set()

def split_ops(s):
    out, depth, cur = [], 0, ""
    for ch in s:
        if ch == "[": depth += 1
        if ch == "]": depth -= 1
        if ch == "," and depth == 0:
            out.append(cur.strip()); cur = ""
        else: cur += ch
    if cur.strip(): out.append(cur.strip())
    return out

class Ins:
    def __init__(self, text):
        self.text = text
        t = text.split(";")[0].strip()
        self.kind = "other"; self.w = set(); self.r = set(); self.states = 1
        self.srcc = set(); self.ab = set(); self.storedata = set(); self.dpp = False
        self.mn = ""
        if not t or t.endswith(":") or t.startswith("."):
            self.kind = "label"; self.states = 0; return
        sp = t.split(None, 1)
        mn = sp[0]; self.mn = mn
        rest = sp[1] if len(sp) > 1 else ""
        ops = split_ops(rest)
        if ops:
            parts = ops[-1].split()
            ops[-1] = parts[0]; mods = " ".join(parts[1:])
        else: mods = ""
        self.mods = mods
        R = [regs_of(o) for o in ops]
        if mn == "s_nop":
            self.kind = "nop"; self.states = int(ops[0], 0) + 1
        elif mn.startswith("v_mfma"):
            self.kind = "mfma"; self.w = R[0]; self.ab = R[1] | R[2]; self.srcc = R[3]; self.r = self.ab | self.srcc
            self.passes = 8 if "32x32" in mn else 4
        elif mn.startswith("v_"):
            self.kind = "valu"
            base = re.sub(r"_(e32|e64|dpp|sdwa)$", "", mn)
            self.base = base
            self.trans = base in TRANS
            self.dpp = mn.endswith("_dpp")
            if base.startswith("v_permlane") and "swap" in base:
                self.w = R[0] | R[1]; self.r = R[0] | R[1]; self.perm = True
            elif base.startswith("v_cmp"):
                self.w = R[0]; self.r = set().union(*R[1:])
            elif base in ("v_add_co_u32", "v_sub_co_u32", "v_addc_co_u32", "v_mad_u64_u32"):
                self.w = R[0] | R[1]; self.r = set().union(*R[2:])
            else:
                self.w = R[0]; self.r = set().union(*R[1:]) if len(R) > 1 else set()
                if base in ("v_fmac_f32", "v_dot2c_f32_bf16", "v_writelane_b32") or self.dpp: self.r |= R[0]
        elif mn.startswith("ds_"):
            self.kind = "ds"
            if "read" in mn or "bpermute" in mn or "swizzle" in mn:
                self.w = R[0]; self.r = set().union(*R[1:])
            else: self.r = set().union(*R)
        elif mn.startswith("buffer_") or mn.startswith("global_"):
            self.kind = "vmem"
            self.lds = " lds" in (" " + mods) or "_lds_" in mn
            if mn.startswith("buffer_wbl2") or mn.startswith("buffer_inv"): pass
            elif "load" in mn and not self.lds:
                self.w = R[0]; self.r = set().union(*R[1:])
            else:
                self.r = set().union(*R)
                if "store" in mn and ("x4" in mn or "x3" in mn):
                    self.storedata = R[0] if mn.startswith("buffer_") else R[1]
            if self.lds: self.r |= {("s", 124)}
        elif mn.startswith("s_"):
            self.kind = "salu"
            if mn.startswith(("s_cmp", "s_cbranch", "s_branch", "s_waitcnt", "s_barrier", "s_endpgm", "s_sleep", "s_setprio", "s_bitcmp")):
                self.r = set().union(*R) if R else set()
            else:
                self.w = R[0] if R else set(); self.r = set().union(*R[1:]) if len(R) > 1 else set()
                if "saveexec" in mn: self.w = self.w | {("s", 126), ("s", 127)}

def vonly(S): return {x for x in S if x[0] in "va"}
def sonly(S): return {x for x in S if x[0] == "s"}

def need(p, c):
    n = 0
    if p.kind == "valu":
        wv, ws = vonly(p.w), sonly(p.w)
        if c.kind == "mfma" and wv & c.r: n = max(n, 2)
        if c.kind == "valu":
            if p.trans and wv & c.r: n = max(n, 1)
            if (c.dpp or getattr(c, "perm", False)) and wv & c.r: n = max(n, 2)
            if c.base in ("v_readlane_b32", "v_readfirstlane_b32") and wv & c.r: n = max(n, 1)
            if ws & c.r: n = max(n, 4 if c.base in ("v_readlane_b32", "v_writelane_b32") else 2)
            if c.base == "v_cndmask_b32" and ws & {("s", 106)} and not sonly(c.r): n = max(n, 2)
            if "sdwa" in p.mn and wv & (c.r | c.w): n = max(n, 1)
        if c.kind in ("ds", "vmem") and p.trans and wv & c.r: n = max(n, 1)
        if c.kind == "vmem" and ws & c.r: n = max(n, 5)
        if c.kind == "salu" and ws & c.r: n = max(n, 1)
    if p.kind == "mfma":
        big = p.passes == 8
        if c.kind == "mfma":
            if p.w & c.ab: n = max(n, 12 if big else 8)
            if p.w & c.srcc and not (p.w == c.srcc and p.passes == c.passes): n = max(n, 10 if big else 6)
            if p.w & c.w and not (p.w == c.srcc): n = max(n, 10 if big else 6)
        elif c.kind in ("valu", "ds", "vmem"):
            if p.w & (c.r | c.w): n = max(n, 12 if big else 8)
            if c.kind == "valu" and p.srcc & c.w: n = max(n, 7 if big else 3)
            if c.kind in ("ds", "vmem") and p.srcc & c.w: n = max(n, 7 if big else 3)
    if p.kind == "salu" and ("s", 124) in p.w and c.kind == "vmem" and getattr(c, "lds", False): n = max(n, 1)
    if p.kind == "vmem" and p.storedata and p.storedata & c.w: n = max(n, 2)
    if p.kind == "ds" and "write" in p.mn and ("b128" in p.mn or "b96" in p.mn) and c.kind == "valu" and vonly(p.r) & c.w: n = max(n, 1)
    return n

def hazard_pass(lines):
    out = []; hist = []
    nn = 0
    for ln in lines:
        ins = Ins(ln)
        if ins.kind != "label":
            req = 0; dist = 0
            for p in reversed(hist):
                k = need(p, ins)
                if k - dist > req: req = k - dist
                dist += p.states
                if dist >= 12: break
            while req > 0:
                k = min(req, 16)
                out.append(f"s_nop {k-1}"); hist.append(Ins(f"s_nop {k-1}")); req -= k; nn += 1
            hist.append(ins)
            if len(hist) > 40: hist = hist[-20:]
        out.append(ln)
    return out, nn

class Asm:
    def __init__(self):
        self.L = []; self.vm = 0; self.lg = 0; self.vm_done = 0; self.lg_done = 0
    def __call__(self, s):
        for ln in s.split("\n"):
            ln = ln.strip()
            if not ln: continue
            mn = ln.split()[0]
            self.L.append(ln)
            if (mn.startswith("buffer_") or mn.startswith("global_")): self.vm += 1
            elif mn.startswith("ds_"): self.lg += 1
        return None
    def vmark(self): return self.vm
    def lmark(self): return self.lg
    def wait(self, vm=None, lg=None):
        parts = []
        if vm is not None and vm > self.vm_done:
            n = min(self.vm - vm, 63); parts.append(f"vmcnt({n})"); self.vm_done = self.vm - n
        if lg is not None and lg > self.lg_done:
            n = min(self.lg - lg, 15); parts.append(f"lgkmcnt({n})"); self.lg_done = self.lg - n
        if parts: self.L.append("s_waitcnt " + " ".join(parts))
    def waitall(self, vm=True, lg=True):
        self.wait(self.vm if vm else None, self.lg if lg else None)
    def label(self, n): self.L.append(n + ":")
    def text(self):
        o, nn = hazard_pass(self.L)
        self.nops = nn
        return "\n".join(o) + "\n"

def vr(a, n=1, t="v"): return f"{t}{a}" if n == 1 else f"{t}[{a}:{a+n-1}]"
def interleave(main, fill, per=2, start=0):
    out = []; fi = 0
    for k, m in enumerate(main):
        out.append(m)
        if k >= start:
            for _ in range(per):
                if fi < len(fill): out.append(fill[fi]); fi += 1
    out += fill[fi:]
    return out
```

```python
import sys, struct
from asmlib import Asm, vr, interleave

KN = "recurrent_scan__sliding_local_dilated__mixer_gmlp__prompt_kernel"
def f2u(x): return struct.unpack("<I", struct.pack("<f", x))[0]
def hx(x): return "0x%08x" % (x & 0xffffffff)

WS_FZ2, WS_FO, WS_FU = 0x1000, 0x2000, 0x4000
WS_STAT, WS_O, WS_U, WS_Z2, WS_DBG = 0x10000, 0x100000, 0x300000, 0x600000, 0x900000
WS_SIZE = 0x1000000
XT, RING, MISC = 0, 81920, 155648
LN1T = MISC
LN2T = MISC + 1024
WST, Z1X, OX = 0, 114688, 139264
RED = 65536
WOL = 0
WOUTL = 65536
SX, SQKV, SWO, SWIN, SWSP, SBSP, SWOUT, SOUT, SWS, SZ2 = 4, 8, 12, 16, 20, 24, 28, 32, 36, 40
sW, sI, sJ, sTAG, sB, sCH, sOWN, sRC = 66, 67, 68, 69, 70, 71, 72, 73
sXK, sZK, sQK = 74, 78, 82
sM0R = 86
sT0, sT1, sT2 = 87, 88, 89
sMC1, sMC2 = 90, 92
sKG = 94
sCNT, sT3, sEX = 96, 97, 98
sDBG = 62
sST = 44
vL16, vX, vXH, vZZ, vZ1, vQ, vXA, vXB, vZA, vQA, vONE = 4, 5, 6, 7, 10, 13, 14, 18, 22, 28, 32
vC, vG = 1, 2
vBIAS = 36
aZZ = 40
T = 176

def srd(r): return f"s[{r}:{r+3}]"
def mfma(d, a, b, c, at="v", bt="v", k32=True):
    n = 4 if k32 else 2
    nm = "v_mfma_f32_16x16x32_bf16" if k32 else "v_mfma_f32_16x16x16_bf16"
    cc = "0" if c is None else vr(c, 4)
    return f"{nm} {vr(d,4)}, {vr(a,n,at)}, {vr(b,n,bt)}, {cc}"

def gelu(A, xs, tmp):
    o = []
    P = lambda r: vr(r, 2)
    for k, x in enumerate(xs): o.append(f"v_pk_mul_f32 {P(tmp+2*k)}, {P(x)}, {P(x)}")
    for k, x in enumerate(xs): o.append(f"v_pk_fma_f32 {P(tmp+2*k)}, {P(tmp+2*k)}, s[{sKG}:{sKG+1}], s[{sKG}:{sKG+1}] op_sel:[0,1,0] op_sel_hi:[1,1,0]")
    for k, x in enumerate(xs): o.append(f"v_pk_mul_f32 {P(tmp+2*k)}, {P(tmp+2*k)}, {P(x)}")
    for k, x in enumerate(xs):
        o.append(f"v_exp_f32 v{tmp+2*k}, v{tmp+2*k}"); o.append(f"v_exp_f32 v{tmp+2*k+1}, v{tmp+2*k+1}")
    for k, x in enumerate(xs): o.append(f"v_pk_add_f32 {P(tmp+2*k)}, {P(tmp+2*k)}, 1.0 op_sel_hi:[1,0]")
    for k, x in enumerate(xs):
        o.append(f"v_rcp_f32 v{tmp+2*k}, v{tmp+2*k}"); o.append(f"v_rcp_f32 v{tmp+2*k+1}, v{tmp+2*k+1}")
    for k, x in enumerate(xs): o.append(f"v_pk_mul_f32 {P(x)}, {P(tmp+2*k)}, {P(x)}")
    return o

def bfround(r): return [f"v_cvt_pk_bf16_f32 v{r}, v{r}, v{r}", f"v_and_b32 v{r}, 0xffff0000, v{r}"]

def ln_stats(s, q, n, t):
    o = [f"v_mul_f32 v{s}, {hx(f2u(1.0/n))}, v{s}", f"v_mul_f32 v{q}, {hx(f2u(1.0/n))}, v{q}",
         f"v_fma_f32 v{q}, -v{s}, v{s}, v{q}", f"v_max_f32 v{q}, 0, v{q}"]
    o += bfround(q) + bfround(s)
    o += [f"v_add_f32 v{q}, {hx(f2u(1e-5))}, v{q}"] + bfround(q)
    o += [f"v_sqrt_f32 v{q}, v{q}"] + bfround(q) + [f"v_rcp_f32 v{q}, v{q}"]
    return o

def gen(stamp=False, nt_w="nt", nt_in="", dbg=False):
    A = Asm()
    nst = [0]
    def ST():
        if stamp:
            A(f"s_memrealtime s[{sST+2*nst[0]}:{sST+2*nst[0]+1}]"); nst[0] += 1
            A("s_waitcnt lgkmcnt(0)"); A.lg_done = A.lg
    A(f"; @launch grid=(256,1,1) block=(256,1,1) lds=163840")
    A('.amdgcn_target "amdgcn-amd-amdhsa--gfx950"')
    A(".text"); A(f".globl {KN}"); A(".p2align 8"); A(f".type {KN},@function"); A.label(KN)
    if stamp: A("s_memrealtime s[100:101]"); A("s_nop 0"); A("s_nop 0")
    A("s_cmp_ge_u32 s2, 256"); A("s_cbranch_scc1 L_end")
    A("s_load_dwordx16 s[44:59], s[0:1], 0"); A("s_load_dwordx4 s[60:63], s[0:1], 64"); A("s_load_dwordx2 s[64:65], s[0:1], 80")
    A(f"v_lshrrev_b32 v1, 6, v0"); A("v_and_b32 v0, 63, v0"); A(f"v_readfirstlane_b32 s{sW}, v1")
    A(f"s_and_b32 s3, s2, 7"); A(f"s_lshr_b32 s{sT0}, s2, 3")
    A(f"s_lshr_b32 s{sI}, s3, 1"); A(f"s_lshl_b32 s{sI}, s{sI}, 3"); A(f"s_lshr_b32 s{sT1}, s{sT0}, 2"); A(f"s_add_u32 s{sI}, s{sI}, s{sT1}")
    A(f"s_and_b32 s{sRC}, s{sT1}, 3")
    A(f"s_and_b32 s{sJ}, s3, 1"); A(f"s_lshl_b32 s{sJ}, s{sJ}, 2"); A(f"s_and_b32 s{sT1}, s{sT0}, 3"); A(f"s_add_u32 s{sJ}, s{sJ}, s{sT1}")
    A(f"s_lshr_b32 s{sB}, s{sW}, 1"); A(f"s_and_b32 s{sCH}, s{sW}, 1")
    A(f"s_add_u32 s{sOWN}, s{sW}, s{sJ}"); A(f"s_and_b32 s{sOWN}, s{sOWN}, 3")
    A(f"v_and_b32 v{vC}, 15, v0"); A(f"v_lshrrev_b32 v{vG}, 4, v0"); A(f"v_lshlrev_b32 v{vL16}, 4, v0")
    t0, t1, t2, t3, t4, t5 = T, T+1, T+2, T+3, T+4, T+5
    vRP, vCP = T+8, T+9
    A(f"v_bfe_u32 v{vRP}, v0, 2, 2"); A(f"v_and_b32 v{vCP}, 3, v0")
    A(f"s_lshl_b32 s3, s{sW}, 2"); A(f"v_add_u32 v{t0}, s3, v{vG}")
    A(f"v_xor_b32 v{t1}, v{t0}, v{vC}"); A(f"v_lshlrev_b32 v{t1}, 4, v{t1}")
    A(f"v_lshl_add_u32 v{vX}, v{t0}, 11, v{t1}")
    A(f"v_and_b32 v{t2}, 7, v{t0}"); A(f"v_lshrrev_b32 v{t3}, 3, v{t0}"); A(f"v_lshl_add_u32 v{t2}, v{t2}, 1, v{t3}")
    A(f"v_lshl_add_u32 v{vXH}, v{t2}, 10, v{t1}")
    A(f"s_cmp_eq_u32 s{sI}, 0"); A(f"s_cselect_b32 s3, 0x80000000, 0"); A(f"v_or_b32 v{vXH}, s3, v{vXH}")
    for kc in range(4):
        A(f"s_add_u32 s3, s{sRC}, {kc}"); A("s_and_b32 s3, s3, 3")
        A(f"s_lshl_b32 s{sT0}, s3, 8"); A(f"s_lshl_b32 s{sT1}, s{sI}, 16"); A(f"s_add_u32 s{sXK+kc}, s{sT0}, s{sT1}")
        A(f"s_lshl_b32 s{sT0}, s3, 7"); A(f"s_lshl_b32 s{sT1}, s{sW}, 4"); A(f"s_add_u32 s{sT1}, s{sT1}, s{sT0}"); A(f"s_mul_i32 s{sT1}, s{sT1}, 2752")
        A(f"s_mul_i32 s{sT2}, s{sJ}, 192"); A(f"s_add_u32 s{sZK+kc}, s{sT1}, s{sT2}")
        A(f"s_lshl_b32 s{sT1}, s{sW}, 3"); A(f"s_add_u32 s{sT1}, s{sT1}, s{sT0}"); A(f"s_mul_i32 s{sT1}, s{sT1}, 3072")
        A(f"s_lshl_b32 s{sT2}, s{sJ}, 7"); A(f"s_add_u32 s{sQK+kc}, s{sT1}, s{sT2}")
    A(f"s_mul_i32 s{sM0R}, s{sW}, 3072"); A(f"s_add_u32 s{sM0R}, s{sM0R}, {RING}")
    A(f"s_mul_i32 s{sT0}, s{sJ}, 6"); A(f"v_mov_b32 v{T+10}, 0x80000000")
    for u in range(3):
        A(f"v_add_u32 v{t0}, {4*u}, v{vG}")
        A(f"v_mul_u32_u24 v{t1}, 11, v{t0}"); A(f"v_lshrrev_b32 v{t1}, 5, v{t1}")
        A(f"v_mul_u32_u24 v{t2}, 3, v{t1}"); A(f"v_sub_u32 v{t2}, v{t0}, v{t2}")
        A(f"v_xor_b32 v{t3}, v{vCP}, v{t1}"); A(f"v_lshrrev_b32 v{t3}, 1, v{t3}")
        A(f"v_lshl_add_u32 v{t3}, v{t2}, 1, v{t3}")
        A(f"v_lshl_add_u32 v{t1}, v{t1}, 2, v{vRP}"); A(f"v_mul_u32_u24 v{t1}, 2752, v{t1}")
        A(f"v_lshl_add_u32 v{t1}, v{t3}, 5, v{t1}"); A(f"v_and_b32 v{t4}, 1, v{vCP}"); A(f"v_lshl_add_u32 v{t1}, v{t4}, 4, v{t1}")
        if u: A(f"v_subrev_u32 v{t1}, {1024*u}, v{t1}")
        A(f"v_add_u32 v{t3}, s{sT0}, v{t3}")
        A(f"v_cmp_gt_u32 vcc, 43, v{t3}"); A(f"v_cndmask_b32 v{vZ1+u}, v{T+10}, v{t1}, vcc")
        A(f"v_subrev_u32 v{t3}, 1, v{t3}")
        A(f"v_cmp_gt_u32 vcc, 43, v{t3}"); A(f"v_add_u32 v{t1}, 1344, v{t1}"); A(f"v_cndmask_b32 v{vZZ+u}, v{T+10}, v{t1}, vcc")
    A(f"v_lshrrev_b32 v{t0}, 1, v{vG}"); A(f"v_lshl_add_u32 v{t0}, v{t0}, 2, v{vRP}"); A(f"v_mul_u32_u24 v{t0}, 3072, v{t0}")
    A(f"v_and_b32 v{t1}, 1, v{vG}"); A(f"v_lshl_add_u32 v{t0}, v{t1}, 6, v{t0}")
    A(f"s_lshl_b32 s3, s{sCH}, 1"); A(f"v_xor_b32 v{t2}, s3, v{vCP}"); A(f"v_lshl_add_u32 v{vQ}, v{t2}, 4, v{t0}")
    A("s_waitcnt lgkmcnt(0)")
    def mk(d, b, n):
        A(f"s_mov_b32 s{d}, s{b}"); A(f"s_mov_b32 s{d+1}, s{b+1}"); A(f"s_mov_b32 s{d+2}, {n}"); A(f"s_mov_b32 s{d+3}, 0x20000")
    mk(SX, 44, 2097152); mk(SWIN, 52, 1409024)
    A(f"s_load_dword s{sTAG}, s[64:65], 0")
    def dma_x(kc):
        o = []
        for blk in range(5):
            o.append(f"s_lshl_b32 m0, s{sW}, 10"); o.append(f"s_add_u32 m0, m0, {XT + kc*20480 + blk*4096}")
            if blk < 4:
                o.append(f"s_add_u32 s3, s{sXK+kc}, {(32*(blk>>1) + (blk&1))*1024}")
                o.append(f"buffer_load_dwordx4 v{vX}, {srd(SX)}, s3 offen {nt_in} lds")
            else:
                o.append(f"s_sub_u32 s3, s{sXK+kc}, 16384"); o.append("s_max_i32 s3, s3, 0")
                o.append(f"buffer_load_dwordx4 v{vXH}, {srd(SX)}, s3 offen {nt_in} lds")
        return o
    units = [("ZZ", n) for n in range(8)]
    for a in range(8): units += [("Q", 2*a), ("Z1", a), ("Q", 2*a+1)]
    uidx = {u: n for n, u in enumerate(units)}
    umark = {}
    def dma_unit(n):
        kind, a = units[n]; o = [f"s_add_u32 m0, s{sM0R}, {(n%6)*12288}"]
        if kind == "Q":
            o.append(f"s_add_u32 s3, s{sQK+(a>>2)}, {(a&3)*32*3072}")
            for p in range(3): o.append(f"buffer_load_dwordx4 v{vQ}, {srd(SQKV)}, s3 offen offset:{p*1024} {nt_in} lds")
        else:
            o.append(f"s_add_u32 s3, s{sZK+(a>>1)}, {(a&1)*64*2752}")
            for u in range(3): o.append(f"buffer_load_dwordx4 v{(vZZ if kind=='ZZ' else vZ1)+u}, {srd(SWIN)}, s3 offen offset:{u*1024} {nt_in} lds")
        o.append(("mark", n))
        return o
    def emit(lst):
        for x in lst:
            if isinstance(x, tuple):
                if x[0] == "mark": umark[x[1]] = A.vmark()
                elif x[0] == "call": x[1]()
            else: A(x)
    xmark = {}
    emit(dma_x(0)); xmark[0] = A.vmark(); emit(dma_unit(0)); emit(dma_unit(1))
    mk(SQKV, 46, 1572864); mk(SWO, 48, 524288); mk(SWSP, 54, 8388608); mk(SBSP, 56, 4096); mk(SWOUT, 58, 704512); mk(SOUT, 60, 2097152); mk(SWS, 64, WS_SIZE)
    A(f"s_add_u32 s{SZ2}, s64, {WS_Z2}"); A(f"s_addc_u32 s{SZ2+1}, s65, 0"); A(f"s_mov_b32 s{SZ2+2}, {43*65536}"); A(f"s_mov_b32 s{SZ2+3}, 0x20000")
    for ks in range(4):
        A(f"v_add_u32 v{t0}, {4*ks}, v{vG}"); A(f"v_xor_b32 v{t0}, v{t0}, v{vC}"); A(f"v_lshlrev_b32 v{t0}, 4, v{t0}")
        A(f"v_lshl_add_u32 v{vXA+ks}, v{vC}, 8, v{t0}")
    A(f"s_lshl_b32 s3, s{sB}, 13")
    for ks in range(4): A(f"v_add_u32 v{vXB+ks}, s3, v{vXA+ks}")
    A(f"v_lshlrev_b32 v{t0}, 6, v{vRP}"); A(f"v_lshl_add_u32 v{t0}, v{vCP}, 3, v{t0}")
    A(f"v_and_b32 v{t1}, 1, v{vG}")
    A(f"v_mul_u32_u24 v{t2}, 1536, v{vG}"); A(f"v_add_u32 v{t2}, v{t2}, v{t0}")
    for t in range(3):
        A(f"s_mul_i32 s3, s{sCH}, 3"); A(f"s_add_u32 s3, s3, {t}"); A(f"s_and_b32 s{sT0}, s3, 1"); A(f"s_lshr_b32 s3, s3, 1"); A("s_lshl_b32 s3, s3, 8"); A(f"s_add_u32 s3, s3, {RING}")
        A(f"v_xor_b32 v{t3}, s{sT0}, v{t1}"); A(f"v_lshl_add_u32 v{t3}, v{t3}, 5, v{t2}"); A(f"v_add_u32 v{vZA+t}, s3, v{t3}"); A(f"v_add_u32 v{vZA+3+t}, 36864, v{vZA+t}")
    A(f"v_mul_u32_u24 v{t2}, 3072, v{vG}"); A(f"v_add_u32 v{t2}, v{t2}, v{t0}")
    A(f"v_xor_b32 v{t3}, s{sCH}, v{t1}"); A(f"v_lshl_add_u32 v{t3}, v{t3}, 5, v{t2}")
    A(f"s_lshl_b32 s3, s{sB}, 8"); A(f"s_add_u32 s3, s3, {RING}"); A(f"v_add_u32 v{vQA}, s3, v{t3}"); A(f"v_add_u32 v{vQA+1}, 36864, v{vQA}")
    for k in range(4): A(f"v_mov_b32 v{vONE+k}, 0x3f803f80")
    A(f"s_mov_b32 s{sMC1}, 0xaaaaaaaa"); A(f"s_mov_b32 s{sMC1+1}, 0xaaaaaaaa"); A(f"s_mov_b32 s{sMC2}, 0xcccccccc"); A(f"s_mov_b32 s{sMC2+1}, 0xcccccccc")
    K0 = -2.0*0.7978845608028654*1.4426950408889634
    A(f"s_mov_b32 s{sKG}, {hx(f2u(K0))}"); A(f"s_mov_b32 s{sKG+1}, {hx(f2u(K0*0.044715))}")
    emit(dma_x(1)); xmark[1] = A.vmark(); emit(dma_unit(2)); emit(dma_unit(3))
    emit(dma_x(2)); xmark[2] = A.vmark(); emit(dma_unit(4)); emit(dma_unit(5)); emit(dma_x(3)); xmark[3] = A.vmark()
    A("s_waitcnt lgkmcnt(0)")
    A(f"s_mul_i32 s{sTAG}, s{sTAG}, 0x0019660d"); A(f"s_add_u32 s{sTAG}, s{sTAG}, 0x3c6ef35f")
    ST()
    csZZ, sumZ, gramZ = 64, 76, 84
    aQ, aK, aV, aZ1, csQ, csK, csV, csZ1, sumH, gramH = 64, 80, 100, 120, 144, 148, 152, 156, 168, 172
    def zbuf(c): return (c & 1) * 40
    def rbuf(d): return 152 + (d & 1) * 52
    def ztr(dst, t, n, ks, e):
        sl = n % 6
        return f"ds_read_b64_tr_b16 {vr(dst+2*e,2,'a')}, v{vZA + 3*(sl//3) + t} offset:{(sl%3)*12288 + ks*6144 + e*768}"
    def reads(G):
        o = []
        if G < 8:
            c = G; b = zbuf(c); kc = c >> 1
            if c == 4:
                for ks in range(4): o.append(f"v_add_u32 v{vXB+ks}, 40960, v{vXB+ks}")
            for k2 in range(2):
                ks = 2*(c & 1) + k2
                for p in range(2): o.append(f"ds_read_b128 {vr(b + (k2*2+p)*4, 4, 'a')}, v{vXB+ks} offset:{(kc&1)*20480 + p*4096}")
                for t in range(3):
                    for e in range(2): o.append(ztr(b + 16 + (k2*3+t)*4, t, c, k2, e))
        else:
            d = G - 8; b = rbuf(d); kc = d >> 2; ks = d & 3
            if d == 0:
                for k in range(4): o.append(f"v_subrev_u32 v{vXB+k}, 40960, v{vXB+k}")
            if d == 8:
                for k in range(4): o.append(f"v_add_u32 v{vXB+k}, 40960, v{vXB+k}"); o.append(f"v_add_u32 v{vXA+k}, 40960, v{vXA+k}")
            n = uidx[("Q", d)]; sl = n % 6
            for p in range(3):
                for e in range(2): o.append(f"ds_read_b64_tr_b16 {vr(b+28+p*4+2*e,2,'a')}, v{vQA + sl//3} offset:{(sl%3)*12288 + p*1024 + e*512}")
            for blk in range(5): o.append(f"ds_read_b128 {vr(b + blk*4, 4, 'a')}, v{vXA+ks} offset:{(kc&1)*20480 + blk*4096}")
            for p in range(2): o.append(f"ds_read_b128 {vr(b + 20 + p*4, 4, 'a')}, v{vXB+ks} offset:{(kc&1)*20480 + p*4096}")
            n = uidx[("Z1", d >> 1)]
            for t in range(3):
                for e in range(2): o.append(ztr(b + 40 + t*4, t, n, d & 1, e))
        return o
    def mfmas(G):
        o = []
        if G < 8:
            b = zbuf(G)
            for k2 in range(2):
                first = (G == 0 and k2 == 0)
                C = lambda r: None if first else r
                for t in range(3):
                    wf = b + 16 + (k2*3+t)*4
                    for p in range(2): o.append(mfma(aZZ+(p*3+t)*4, b+(k2*2+p)*4, wf, C(aZZ+(p*3+t)*4), "a", "a"))
                    o.append(mfma(csZZ+t*4, vONE, wf, C(csZZ+t*4), "v", "a"))
                for p in range(2):
                    xf = b+(k2*2+p)*4
                    o.append(mfma(sumZ+p*4, vONE, xf, C(sumZ+p*4), "v", "a")); o.append(mfma(gramZ+p*4, xf, xf, C(gramZ+p*4), "a", "a"))
        else:
            d = G - 8; b = rbuf(d); C = lambda r: None if d == 0 else r
            for blk in range(4): o.append(mfma(aQ+blk*4, b+28, b+blk*4, C(aQ+blk*4), "a", "a"))
            o.append(mfma(csQ, b+28, vONE, C(csQ), "a", "v"))
            for blk in range(5): o.append(mfma(aK+blk*4, b+32, b+blk*4, C(aK+blk*4), "a", "a"))
            o.append(mfma(csK, b+32, vONE, C(csK), "a", "v"))
            for blk in range(5): o.append(mfma(aV+blk*4, b+blk*4, b+36, C(aV+blk*4), "a", "a"))
            o.append(mfma(csV, vONE, b+36, C(csV), "v", "a"))
            o.append(mfma(sumH, vONE, b+16, C(sumH), "v", "a")); o.append(mfma(gramH, b+16, b+16, C(gramH), "a", "a"))
            for t in range(3):
                for p in range(2): o.append(mfma(aZ1+(p*3+t)*4, b+40+t*4, b+20+p*4, C(aZ1+(p*3+t)*4), "a", "a"))
                o.append(mfma(csZ1+t*4, b+40+t*4, vONE, C(csZ1+t*4), "a", "v"))
        return o
    def needs(G):
        if G < 8: return max(umark[G], xmark[G >> 1])
        d = G - 8
        return max(umark[uidx[("Q", d)]], umark[uidx[("Z1", d >> 1)]])
    def freed(G):
        if G < 8: return [G]
        d = G - 8
        return [uidx[("Q", d)]] if d % 2 == 0 else [uidx[("Z1", d >> 1)], uidx[("Q", d)]]

    def stat_write(sumr, gramr, blkexpr_imm, addr, tmp):
        o = [f"v_cndmask_b32 v{tmp}, v{gramr}, v{gramr+1}, s[{sMC1}:{sMC1+1}]", f"v_cndmask_b32 v{tmp+1}, v{gramr+2}, v{gramr+3}, s[{sMC1}:{sMC1+1}]",
             f"v_cndmask_b32 v{tmp+1}, v{tmp}, v{tmp+1}, s[{sMC2}:{sMC2+1}]", f"v_mov_b32 v{tmp}, v{sumr}"]
        o += ln_stats(tmp, tmp+1, 512, None)
        o += [f"s_mov_b32 exec_lo, 0x00f0000f", f"s_mov_b32 exec_hi, 0xf0000f00",
              f"ds_write2_b32 v{addr}, v{tmp}, v{tmp+1} offset0:{blkexpr_imm*16} offset1:{80+blkexpr_imm*16}", "s_mov_b64 exec, -1"]
        return o

    def poll(name, issue_fn, check_fn, code):
        check_fn()
        A(f"s_cbranch_vccnz L_{name}_slow"); A.label(f"L_{name}_ok")
        def slow():
            A.label(f"L_{name}_slow"); A(f"s_mov_b32 s{sCNT}, 0"); A.label(f"L_{name}_loop")
            A("s_sleep 2"); issue_fn(); A("s_waitcnt vmcnt(0)"); check_fn()
            A(f"s_cbranch_vccz L_{name}_ok")
            A(f"s_add_u32 s{sCNT}, s{sCNT}, 1"); A(f"s_cmp_lt_u32 s{sCNT}, 100000"); A(f"s_cbranch_scc1 L_{name}_loop")
            A(f"v_mov_b32 v{T+78}, {code}"); A(f"v_mov_b32 v{T+79}, 0"); A(f"global_store_dword v{T+79}, v{T+78}, s[{sDBG}:{sDBG+1}]"); A("s_waitcnt vmcnt(0)")
            A(f"s_branch L_{name}_ok")
        slowpaths.append(slow)
    slowpaths = []

    def zz_epilogue():
        va = T + 70
        A(f"s_lshl_b32 s3, s{sB}, 7"); A(f"s_add_u32 s3, s3, {LN1T}"); A(f"v_lshl_add_u32 v{va}, v{vC}, 2, s3")
        for p in range(2): emit(stat_write(sumZ+p*4, gramZ+p*4, p, va, T + 2*p))
        A(f"v_lshl_add_u32 v{va}, v{vG}, 4, s3")
        mr = T + 24
        for p in range(2):
            A(f"ds_read_b128 {vr(mr+p*8,4)}, v{va} offset:{p*64}"); A(f"ds_read_b128 {vr(mr+p*8+4,4)}, v{va} offset:{320+p*64}")
        A.waitall(vm=False)
        for p in range(2):
            for t in range(3):
                for h in range(2):
                    a = aZZ+(p*3+t)*4+2*h
                    A(f"v_pk_fma_f32 {vr(a,2)}, {vr(mr+p*8+2*h,2)}, {vr(csZZ+t*4,2)}, {vr(a,2)} neg_lo:[1,0,0] neg_hi:[1,0,0]")
        for p in range(2):
            for t in range(3):
                for h in range(2):
                    a = aZZ+(p*3+t)*4+2*h
                    A(f"v_pk_mul_f32 {vr(a,2)}, {vr(a,2)}, {vr(mr+p*8+4+2*h,2)}")
        emit(gelu(A, [aZZ+2*k for k in range(12)], T))
        S, Q = T, T + 8
        for p in range(2):
            for h in range(2):
                a = lambda t: aZZ+(p*3+t)*4+2*h
                A(f"v_pk_add_f32 {vr(S+p*4+2*h,2)}, {vr(a(0),2)}, {vr(a(1),2)}")
                A(f"v_pk_mul_f32 {vr(Q+p*4+2*h,2)}, {vr(a(0),2)}, {vr(a(0),2)}")
        for p in range(2):
            for h in range(2):
                a = lambda t: aZZ+(p*3+t)*4+2*h
                A(f"v_pk_add_f32 {vr(S+p*4+2*h,2)}, {vr(S+p*4+2*h,2)}, {vr(a(2),2)}")
                A(f"v_pk_fma_f32 {vr(Q+p*4+2*h,2)}, {vr(a(1),2)}, {vr(a(1),2)}, {vr(Q+p*4+2*h,2)}")
        for p in range(2):
            for h in range(2):
                a = lambda t: aZZ+(p*3+t)*4+2*h
                A(f"v_pk_fma_f32 {vr(Q+p*4+2*h,2)}, {vr(a(2),2)}, {vr(a(2),2)}, {vr(Q+p*4+2*h,2)}")
        bases = [T + 4*k for k in range(4)]
        for r in range(2):
            for b in bases: A(f"v_add_f32_dpp v{b+r}, v{b+r}, v{b+r} row_ror:8 row_mask:0xf bank_mask:0x3")
        for r in range(2):
            for b in bases: A(f"v_add_f32_dpp v{b+r}, v{b+r+2}, v{b+r+2} row_ror:8 row_mask:0xf bank_mask:0xc")
        for b in bases: A(f"v_add_f32_dpp v{b}, v{b}, v{b} row_half_mirror row_mask:0xf bank_mask:0x5")
        for b in bases: A(f"v_add_f32_dpp v{b}, v{b+1}, v{b+1} row_half_mirror row_mask:0xf bank_mask:0xa")
        for b in bases: A(f"v_add_f32_dpp v{b}, v{b}, v{b} quad_perm:[1,0,3,2] row_mask:0xf bank_mask:0xf")
        for b in bases: A(f"v_add_f32_dpp v{b}, v{b}, v{b} quad_perm:[2,3,0,1] row_mask:0xf bank_mask:0xf")
        g = T + 16
        A(f"v_cndmask_b32 v{g}, v{T}, v{T+4}, s[{sMC1}:{sMC1+1}]"); A(f"v_cndmask_b32 v{g+2}, v{T+8}, v{T+12}, s[{sMC1}:{sMC1+1}]")
        A(f"v_mov_b32 v{g+1}, s{sTAG}"); A(f"v_mov_b32 v{g+3}, s{sTAG}")
        A(f"v_lshrrev_b32 v{va}, 2, v0"); A(f"v_and_b32 v{va+1}, 1, v0"); A(f"v_lshl_add_u32 v{va}, v{va}, 1, v{va+1}"); A(f"v_lshlrev_b32 v{va}, 4, v{va}")
        A(f"s_lshl_b32 s3, s{sI}, 1"); A(f"s_add_u32 s3, s3, s{sB}"); A("s_lshl_b32 s3, s3, 13"); A(f"s_add_u32 s{sT3}, s3, {WS_STAT}")
        A(f"s_lshl_b32 s3, s{sJ}, 1"); A(f"s_add_u32 s3, s3, s{sCH}"); A("s_lshl_b32 s3, s3, 9"); A(f"s_add_u32 s3, s3, s{sT3}")
        A(f"buffer_store_dwordx4 {vr(g,4)}, v{va}, {srd(SWS)}, s3 offen sc1")

    GR = T + 24
    def h1_issue():
        A(f"s_add_u32 s3, s{sT3}, 4096")
        for n in range(8): A(f"buffer_load_dwordx4 {vr(GR+4*n,4)}, v{vL16}, {srd(SWS)}, {'s%d'%sT3 if n<4 else 's3'} offen offset:{(n&3)*1024} sc1")
    def h1_check():
        A(f"v_xor_b32 v{T}, s{sTAG}, v{GR+1}")
        for n in range(8):
            for k in (1, 3):
                if n or k == 3:
                    A(f"v_xor_b32 v{T+1}, s{sTAG}, v{GR+4*n+k}"); A(f"v_or_b32 v{T}, v{T}, v{T+1}")
        A(f"v_cmp_ne_u32 vcc, 0, v{T}")
    z2mark = [None]
    def h1_finish():
        poll("h1", h1_issue, h1_check, 1)
        for n in range(1, 8):
            A(f"v_add_f32 v{GR}, v{GR}, v{GR+4*n}"); A(f"v_add_f32 v{GR+2}, v{GR+2}, v{GR+4*n+2}")
        A(f"v_mov_b32 v{GR+1}, v{GR}"); A(f"v_mov_b32 v{GR+3}, v{GR+2}")
        A(f"v_permlane32_swap_b32 v{GR}, v{GR+1}"); A(f"v_permlane32_swap_b32 v{GR+2}, v{GR+3}")
        A(f"v_add_f32 v{GR}, v{GR}, v{GR+1}"); A(f"v_add_f32 v{GR+2}, v{GR+2}, v{GR+3}")
        emit(ln_stats(GR, GR+2, 688, None))
        A(f"v_mul_f32 v{GR}, v{GR}, v{GR+2}")
        va = T + 70
        A(f"v_and_b32 v{va}, 1, v0"); A(f"v_bfe_u32 v{va+1}, v0, 1, 4"); A(f"v_lshl_add_u32 v{va}, v{va}, 4, v{va+1}")
        A(f"s_lshl_b32 s3, s{sW}, 8"); A(f"s_add_u32 s3, s3, {LN2T}"); A(f"v_lshl_add_u32 v{va}, v{va}, 2, s3")
        A(f"ds_write2_b32 v{va}, v{GR}, v{GR+2} offset0:0 offset1:32")
        A(f"v_lshl_add_u32 v{va}, v{vG}, 4, s3")
        mr = T
        for p in range(2):
            A(f"ds_read_b128 {vr(mr+p*8,4)}, v{va} offset:{p*64}"); A(f"ds_read_b128 {vr(mr+p*8+4,4)}, v{va} offset:{128+p*64}")
        A.waitall(vm=False)
        for p in range(2):
            for t in range(3):
                for h in range(2):
                    a = aZZ+(p*3+t)*4+2*h
                    A(f"v_pk_fma_f32 {vr(a,2)}, {vr(a,2)}, {vr(mr+p*8+4+2*h,2)}, {vr(mr+p*8+2*h,2)} neg_lo:[0,0,1] neg_hi:[0,0,1]")
        A(f"s_mul_i32 s3, s{sJ}, 6"); A(f"s_mul_i32 s{sT0}, s{sCH}, 3"); A(f"s_add_u32 s3, s3, s{sT0}"); A("s_sub_u32 s3, s3, 1")
        A(f"s_lshl_b32 s{sT0}, s{sI}, 1"); A(f"s_add_u32 s{sT0}, s{sT0}, s{sB}"); A(f"s_lshl_b32 s{sT0}, s{sT0}, 10")
        for t in range(3):
            for r in range(4): A(f"v_cvt_pk_bf16_f32 v{GR+t*4+r}, v{aZZ+t*4+r}, v{aZZ+(3+t)*4+r}")
            A(f"s_min_u32 s{sT1}, s3, 43"); A(f"s_lshl_b32 s{sT1}, s{sT1}, 16"); A(f"s_add_u32 s{sT1}, s{sT1}, s{sT0}")
            A(f"buffer_store_dwordx4 {vr(GR+t*4,4)}, v{vL16}, {srd(SZ2)}, s{sT1} offen sc1")
            A("s_add_u32 s3, s3, 1")
        z2mark[0] = A.vmark()
    def flag_store(soff_code):
        soff_code()
        A(f"s_cmp_eq_u32 s{sW}, 0"); A(f"s_cselect_b32 s3, s3, {WS_SIZE}")
        A(f"v_mov_b32 v{T+78}, s{sTAG}"); A(f"v_mov_b32 v{T+79}, 0")
        A("s_mov_b64 exec, 1")
        A(f"buffer_store_dword v{T+78}, v{T+79}, {srd(SWS)}, s3 offen sc1")
        A("s_mov_b64 exec, -1")

    wrow = [0]; wmark = {}
    def dma_w(n):
        sg, r = n >> 4, n & 15; o = []
        if r == 0:
            o += [f"s_add_u32 s{sT2}, s{sOWN}, {sg}", f"s_and_b32 s{sT2}, s{sT2}, 3", f"s_lshr_b32 s{sXK}, s{sT2}, 1", f"s_lshl_b32 s{sXK}, s{sXK}, 5",
                  f"s_and_b32 s{sT2}, s{sT2}, 1", f"s_add_u32 s{sXK}, s{sXK}, s{sT2}", f"s_lshl_b32 s{sXK}, s{sXK}, 12", f"s_add_u32 s{sXK}, s{sXK}, s{sXK+1}"]
        else: o.append(f"s_add_u32 s{sXK}, s{sXK}, 8192")
        vt = 30 + (n & 1)
        o += [f"v_xor_b32 v{vt}, {r*16}, v{vL16}", f"s_add_u32 m0, s{sXK+2}, {(n % 28)*1024}",
              f"buffer_load_dwordx4 v{vt}, {srd(SWSP)}, s{sXK} offen {nt_w} lds", ("call", lambda n=n: wmark.__setitem__(n, A.vmark()))]
        return o
    def w_reads(sg):
        o = [("call", lambda: A.wait(vm=wmark[sg*16+15]))]
        s0 = (16*sg) % 28
        o += [f"v_add_u32 v{vXB}, {s0}, v{vC}", f"v_subrev_u32 v{vXB+1}, 28, v{vXB}", f"v_min_u32 v{vXB}, v{vXB}, v{vXB+1}", f"v_lshlrev_b32 v{vXB}, 10, v{vXB}",
              f"v_add_u32 v{vZA}, s{sXK+2}, v{vXB}"]
        for k in range(4): o.append(f"v_add_u32 v{vXB+k}, v{vZA}, v{vXA+k}")
        for ks in range(16): o.append(f"ds_read_b128 {vr((sg*16+ks)*4,4,'a')}, v{vXB+(ks&3)} offset:{(ks>>2)*256}")
        o.append(("call", lambda: A.waitall(vm=False)))
        return o

    A.wait(vm=needs(0)); A("s_barrier"); emit(reads(0))
    nxt = 6
    H1_ISSUE, H1_FIN, Z2_FLAG = 8+4, 8+5, 8+8
    for G in range(24):
        A.waitall(vm=False)
        if G < 23: A.wait(vm=needs(G+1))
        if G == Z2_FLAG: A.wait(vm=z2mark[0])
        A("s_barrier")
        fill = []
        if G == Z2_FLAG:
            fill.append(("call", lambda: flag_store(lambda: (A(f"s_lshl_b32 s3, s{sJ}, 5"), A(f"s_add_u32 s3, s3, s{sI}"), A("s_lshl_b32 s3, s3, 2"), A(f"s_add_u32 s3, s3, {WS_FZ2}")))))
        dm = []
        for n in freed(G):
            if n + 6 < 32: dm += dma_unit(n + 6)
        if G == H1_ISSUE: dm.append(("call", lambda: (h1_issue(), umark.__setitem__("h1", A.vmark()))))
        if G == 23:
            dm += [f"s_lshl_b32 s{sXK+1}, s{sI}, 18", f"s_lshl_b32 s3, s{sW}, 10", f"s_add_u32 s{sXK+1}, s{sXK+1}, s3", f"s_mul_i32 s{sXK+2}, s{sW}, 28672"]
            for k in range(4): dm.append(f"v_and_b32 v{vXA+k}, 0xff, v{vXA+k}")
            for n in range(10): dm += dma_w(n)
            wrow[0] = 10
        rd = reads(G+1) if G < 23 else []
        fill += dm[:5] + rd + dm[5:] if G < 23 else dm
        emit(interleave(mfmas(G), fill, per=2))
        if G == 7: ST(); zz_epilogue(); ST()
        if G == H1_FIN:
            A.wait(vm=umark["h1"]); h1_finish()
    ST()
    E = []
    va = T + 70
    E += [f"v_lshlrev_b32 v{va}, 2, v{vC}", f"v_add_u32 v{va}, {LN1T}, v{va}"]
    E += stat_write(sumH, gramH, 4, va, T)
    mrT2 = T + 4
    for blk in range(5): E.append(f"ds_read2_b32 {vr(mrT2+2*blk,2)}, v{va} offset0:{blk*16} offset1:{80+blk*16}")
    mrZ = T + 14
    E += [f"s_lshl_b32 s3, s{sB}, 7", f"v_add_u32 v{va+1}, s3, v{va}"]
    for p in range(2): E.append(f"ds_read2_b32 {vr(mrZ+2*p,2)}, v{va+1} offset0:{p*16} offset1:{80+p*16}")
    mrT1 = T + 20
    E += [f"v_lshlrev_b32 v{va+1}, 4, v{vG}", f"v_add_u32 v{va+1}, {LN1T}, v{va+1}"]
    for blk in range(5):
        E.append(f"ds_read_b128 {vr(mrT1+blk*8,4)}, v{va+1} offset:{blk*64}"); E.append(f"ds_read_b128 {vr(mrT1+blk*8+4,4)}, v{va+1} offset:{320+blk*64}")
    Mcur, Mprev, MhE, MhO = 40, 44, 48, 52
    NEG = T + 60
    E += [f"v_mov_b32 v{NEG}, 0xf149f2ca", f"v_lshlrev_b32 v{NEG+1}, 2, v{vG}", f"v_sub_u32 v{NEG+1}, v{vC}, v{NEG+1}"]
    E += [f"s_cmp_eq_u32 s{sI}, 0", f"s_cselect_b32 s{sT0}, 0, 7", f"v_cmp_gt_u32 s[{sEX}:{sEX+1}], 2, v{vG}"]
    for r in range(4):
        E += [f"v_subrev_u32 v{NEG+2}, {r}, v{NEG+1}",
              f"v_cmp_gt_u32 vcc, 8, v{NEG+2}", f"v_cndmask_b32 v{Mcur+r}, v{NEG}, 0, vcc",
              f"v_add_u32 v{NEG+3}, 15, v{NEG+2}",
              f"v_cmp_gt_u32 vcc, 7, v{NEG+3}", f"v_cndmask_b32 v{Mprev+r}, v{NEG}, 0, vcc",
              f"v_cmp_gt_u32 vcc, s{sT0}, v{NEG+3}", f"v_cndmask_b32 v{MhO+r}, v{NEG}, 0, vcc",
              f"v_add_u32 v{NEG+3}, 7, v{NEG+2}",
              f"v_cmp_gt_u32 vcc, s{sT0}, v{NEG+3}", f"s_and_b64 vcc, vcc, s[{sEX}:{sEX+1}]", f"v_cndmask_b32 v{MhE+r}, v{NEG}, 0, vcc"]
    E.append(("call", lambda: A.waitall(vm=False)))
    def foldT2(a, cs, mr):
        o = []
        for h in range(2): o.append(f"v_pk_fma_f32 {vr(a+2*h,2)}, {vr(mr,2)}, {vr(cs+2*h,2)}, {vr(a+2*h,2)} op_sel_hi:[0,1,1] neg_lo:[1,0,0] neg_hi:[1,0,0]")
        for h in range(2): o.append(f"v_pk_mul_f32 {vr(a+2*h,2)}, {vr(a+2*h,2)}, {vr(mr,2)} op_sel:[0,1] op_sel_hi:[1,1]")
        return o
    def pack(dst, a): return [f"v_cvt_pk_bf16_f32 v{dst}, v{a}, v{a+1}", f"v_cvt_pk_bf16_f32 v{dst+1}, v{a+2}, v{a+3}"]
    for blk in range(4): E += foldT2(aQ+blk*4, csQ, mrT2+2*blk)
    for blk in range(5): E += foldT2(aK+blk*4, csK, mrT2+2*blk)
    for blk in range(4): E += pack(aQ+blk*4, aQ+blk*4)
    for blk in range(5): E += pack(aK+blk*4, aK+blk*4)
    for blk in range(5):
        a = aV+blk*4
        for h in range(2): E.append(f"v_pk_fma_f32 {vr(a+2*h,2)}, {vr(mrT1+blk*8+2*h,2)}, {vr(csV,2)}, {vr(a+2*h,2)} neg_lo:[1,0,0] neg_hi:[1,0,0]")
        for h in range(2): E.append(f"v_pk_mul_f32 {vr(a+2*h,2)}, {vr(a+2*h,2)}, {vr(mrT1+blk*8+4+2*h,2)}")
    Sc = T + 20
    VB = 144
    for p in range(2):
        E += pack(VB+6*p, aV+16) + pack(VB+6*p+2, aV+p*4) + pack(VB+6*p+4, aV+(2+p)*4)
    for b in range(4):
        prevK = aK+16 if b < 2 else aK+(b-2)*4
        prevM = (MhE, MhO)[b] if b < 2 else Mprev
        E.append(mfma(Sc+8*b, prevK, aQ+b*4, prevM, k32=False)); E.append(mfma(Sc+8*b+4, aK+b*4, aQ+b*4, Mcur, k32=False))
    for p in range(2):
        for t in range(3): E += foldT2(aZ1+(p*3+t)*4, csZ1+t*4, mrZ+2*p)
    mx = T + 4
    for b in range(4): E.append(f"v_max3_f32 v{mx+b}, v{Sc+8*b}, v{Sc+8*b+1}, v{Sc+8*b+2}")
    for b in range(4): E.append(f"v_max3_f32 v{mx+b}, v{mx+b}, v{Sc+8*b+3}, v{Sc+8*b+4}")
    for b in range(4): E.append(f"v_max3_f32 v{mx+b}, v{mx+b}, v{Sc+8*b+5}, v{Sc+8*b+6}")
    for b in range(4): E.append(f"v_max_f32 v{mx+b}, v{mx+b}, v{Sc+8*b+7}")
    for sw in ("v_permlane32_swap_b32", "v_permlane16_swap_b32"):
        for b in range(4): E.append(f"v_mov_b32 v{mx+4+b}, v{mx+b}")
        for b in range(4): E.append(f"{sw} v{mx+b}, v{mx+4+b}")
        for b in range(4): E.append(f"v_max_f32 v{mx+b}, v{mx+b}, v{mx+4+b}")
    CS = 0.25*1.4426950408889634
    E.append(f"s_mov_b32 s{sEX}, {hx(f2u(CS))}")
    m2 = T + 52
    for b in range(4): E.append(f"v_mul_f32 v{m2+2*b}, {hx(f2u(-CS))}, v{mx+b}")
    for b in range(4):
        for h in range(4): E.append(f"v_pk_fma_f32 {vr(Sc+8*b+2*h,2)}, {vr(Sc+8*b+2*h,2)}, s[{sEX}:{sEX+1}], {vr(m2+2*b,2)} op_sel_hi:[1,0,0]")
    for b in range(4):
        for k in range(8): E.append(f"v_exp_f32 v{Sc+8*b+k}, v{Sc+8*b+k}")
    for b in range(4):
        for h in range(4): E.append(f"v_cvt_pk_bf16_f32 v{Sc+8*b+h}, v{Sc+8*b+2*h}, v{Sc+8*b+2*h+1}")
    Oa, La = aQ, aK
    for b in range(4):
        E.append(mfma(Oa+4*b, VB+6*(b&1)+2*(b>>1), Sc+8*b, None)); E.append(mfma(La+4*b, vONE, Sc+8*b, None))
    E += gelu(A, [aZ1+2*k for k in range(6)], T+4)
    for b in range(4): E.append(f"v_rcp_f32 v{La+4*b}, v{La+4*b}")
    for b in range(4):
        for h in range(2): E.append(f"v_pk_mul_f32 {vr(Oa+4*b+2*h,2)}, {vr(Oa+4*b+2*h,2)}, {vr(La+4*b,2)} op_sel_hi:[1,0]")
    for b in range(4): E += pack(Oa+4*b, Oa+4*b)
    E += [f"s_lshl_b32 s3, s{sB}, 10", f"s_lshl_b32 s{sT0}, s{sCH}, 3", f"s_add_u32 s3, s3, s{sT0}", f"s_add_u32 s3, s3, {OX}", f"v_add_u32 v{va}, s3, v{vL16}"]
    for b in range(4): E.append(f"ds_write_b64 v{va}, {vr(Oa+4*b,2)} offset:{b*2048}")
    E += gelu(A, [aZ1+12+2*k for k in range(6)], T+4)
    E += [f"s_mul_i32 s3, s{sB}, 12288", f"s_mul_i32 s{sT0}, s{sCH}, 3072", f"s_add_u32 s3, s3, s{sT0}", f"s_add_u32 s3, s3, {Z1X}", f"v_add_u32 v{va}, s3, v{vL16}"]
    for p in range(2):
        for t in range(3): E.append(f"ds_write_b128 v{va}, {vr(aZ1+(p*3+t)*4,4)} offset:{p*6144+t*1024}")
    out = []; cnt = 0
    for x in E:
        out.append(x); cnt += 1
        if cnt % 14 == 0 and not (isinstance(x, str) and x.startswith(("s_mov_b32 exec", "s_cmp", "ds_write2"))):
            if wrow[0] == 28 and 0 not in wmark.get("rd", []):
                out += w_reads(0); wmark.setdefault("rd", []).append(0)
            elif wrow[0] < 44:
                out += dma_w(wrow[0]); wrow[0] += 1
    emit(out)
    A.waitall(vm=False); A("s_barrier")
    A(f"s_lshl_b32 s3, s{sW}, 11"); A(f"s_add_u32 s3, s3, {OX}"); A(f"v_add_u32 v{va}, s3, v{vL16}")
    for a in range(2): A(f"ds_read_b128 {vr(T+4*a,4)}, v{va} offset:{a*1024}")
    A(f"s_mul_i32 s3, s{sOWN}, 6144"); A(f"s_add_u32 s3, s3, {Z1X}"); A(f"v_add_u32 v{va}, s3, v{vL16}")
    for t in range(6): A(f"ds_read_b128 {vr(40+4*t,4)}, v{va} offset:{t*1024}")
    A(f"s_lshr_b32 s3, s{sOWN}, 1"); A("s_lshl_b32 s3, s3, 5"); A(f"s_and_b32 s{sT0}, s{sOWN}, 1"); A(f"s_add_u32 s3, s3, s{sT0}"); A(f"s_lshl_b32 s{sT0}, s{sI}, 6"); A(f"s_add_u32 s3, s3, s{sT0}"); A("s_lshl_b32 s3, s3, 1")
    A(f"v_lshlrev_b32 v{va}, 2, v{vC}")
    A(f"buffer_load_ushort v{vBIAS}, v{va}, {srd(SBSP)}, s3 offen"); bm = A.vmark()
    A.waitall(vm=False)
    A(f"s_lshl_b32 s3, s{sI}, 2"); A(f"s_add_u32 s3, s3, s{sW}"); A("s_lshl_b32 s3, s3, 14"); A(f"s_lshl_b32 s{sT0}, s{sJ}, 11"); A(f"s_add_u32 s3, s3, s{sT0}"); A(f"s_add_u32 s3, s3, {WS_O}")
    for a in range(2): A(f"buffer_store_dwordx4 {vr(T+4*a,4)}, v{vL16}, {srd(SWS)}, s3 offen offset:{a*1024} sc1")
    om = A.vmark()
    done = wmark.get("rd", [])
    for sg in range(4):
        if sg in done: continue
        lim = min(64, 16*sg + 28)
        while wrow[0] < lim: emit(dma_w(wrow[0])); wrow[0] += 1
        if sg == 3:
            A(f"v_bfe_u32 v{T+8}, v0, 3, 1"); A(f"v_add_u32 v{T+8}, s{sJ}, v{T+8}"); A(f"v_min_u32 v{T+8}, 7, v{T+8}"); A(f"v_lshlrev_b32 v{T+8}, 5, v{T+8}")
            A(f"v_and_b32 v{T+9}, 7, v0"); A(f"v_add_u32 v{T+8}, v{T+8}, v{T+9}"); A(f"v_lshlrev_b32 v{T+8}, 2, v{T+8}")
            A(f"s_lshl_b32 s{sT3}, s{sW}, 5"); A(f"s_add_u32 s{sT3}, s{sT3}, {WS_FZ2}")
            fl_issue = lambda: A(f"buffer_load_dword v{T+9}, v{T+8}, {srd(SWS)}, s{sT3} offen sc1")
            fl_issue(); fm = A.vmark()
        emit(w_reads(sg))
        if sg == 2:
            A.wait(vm=om); A("s_barrier")
            flag_store(lambda: (A(f"s_lshl_b32 s3, s{sI}, 7"), A(f"s_lshl_b32 s{sT0}, s{sJ}, 2"), A(f"s_add_u32 s3, s3, s{sT0}"), A(f"s_add_u32 s3, s3, {WS_FO}")))
    A(f"v_lshlrev_b32 v{vBIAS}, 16, v{vBIAS}")
    for k in range(1, 4): A(f"v_mov_b32 v{vBIAS+k}, v{vBIAS}")
    fl_check = lambda: A(f"v_cmp_ne_u32 vcc, s{sTAG}, v{T+9}")
    A.wait(vm=fm); poll("h2", fl_issue, fl_check, 2)
    ST()
    acc2 = 64; ZB = 160; NB = 4
    A(f"s_mul_i32 s{sXK}, s{sJ}, {6*65536}"); A(f"s_lshl_b32 s3, s{sW}, 14"); A(f"s_add_u32 s{sXK}, s{sXK}, s3")
    for t in range(1, 6): A(f"s_add_u32 s{sXK+t}, s{sXK}, {t*65536}")
    zm = {}
    def z2_load(ks):
        o = []
        if ks and ks % 4 == 0:
            for t in range(6): o.append(f"s_add_u32 s{sXK+t}, s{sXK+t}, 4096")
        for t in range(6): o.append(f"buffer_load_dwordx4 {vr(ZB+((ks%NB)*6+t)*4,4)}, v{vL16}, {srd(SZ2)}, s{sXK+t} offen offset:{(ks&3)*1024} sc1")
        o.append(("call", lambda: zm.__setitem__(ks, A.vmark())))
        return o
    vWO = vX
    def wo_setup():
        return [f"v_lshrrev_b32 v{vXH}, 1, v{vG}", f"v_bfe_u32 v{vZZ}, v0, 2, 2", f"v_lshl_add_u32 v{vZZ}, v{vXH}, 2, v{vZZ}", f"v_lshlrev_b32 v{vZZ}, 10, v{vZZ}",
                f"v_and_b32 v{vZZ+1}, 1, v{vG}", f"v_lshl_add_u32 v{vZZ}, v{vZZ+1}, 6, v{vZZ}",
                f"v_and_b32 v{vZZ+1}, 3, v0", f"v_lshlrev_b32 v{vXH}, 1, v{vXH}", f"v_xor_b32 v{vZZ+1}, v{vZZ+1}, v{vXH}", f"v_lshl_add_u32 v{vWO}, v{vZZ+1}, 4, v{vZZ}",
                f"s_lshl_b32 s{sQK}, s{sW}, 13", f"s_lshl_b32 s3, s{sJ}, 7", f"s_add_u32 s{sQK}, s{sQK}, s3", f"s_lshl_b32 s{sQK+1}, s{sW}, 10"]
    def wdma(sr, ldsbase, n):
        return [f"s_add_u32 m0, s{sQK+1}, {ldsbase + n*4096}", f"s_add_u32 s3, s{sQK}, {n*32768}", f"buffer_load_dwordx4 v{vWO}, {srd(sr)}, s3 offen {nt_in} lds"]
    A("s_barrier")
    for ks in range(NB-1): emit(z2_load(ks))
    emit(wo_setup())
    for ks in range(16):
        fill = z2_load(ks+NB-1) if ks+NB-1 < 16 else []
        if ks >= 13:
            lo, hi = {13: (0, 5), 14: (5, 10), 15: (10, 16)}[ks]
            for n in range(lo, hi): fill += wdma(SWO, WOL, n)
        mm = []
        for t in range(6):
            for sg in range(4):
                d = acc2 + (sg*6+t)*4
                c = d if ks else (vBIAS if sg == 0 else None)
                mm.append(mfma(d, ZB+((ks%NB)*6+t)*4, (sg*16+ks)*4, c, "v", "a"))
        A.wait(vm=zm[ks])
        emit(interleave(mm, fill, per=1, start=1))
    wom = A.vmark()
    ST()
    va = vXB
    for sg in range(1, 4):
        A(f"s_add_u32 s3, s{sW}, {sg}"); A("s_and_b32 s3, s3, 3"); A("s_mul_i32 s3, s3, 18432"); A(f"s_add_u32 s3, s3, {RED + (sg-1)*6144}")
        A(f"v_add_u32 v{va+sg}, s3, v{vL16}")
        for t in range(6): A(f"ds_write_b128 v{va+sg}, {vr(acc2+(sg*6+t)*4,4)} offset:{t*1024}")
    A(f"s_mul_i32 s3, s{sW}, 18432"); A(f"s_add_u32 s3, s3, {RED}"); A(f"v_add_u32 v{va}, s3, v{vL16}")
    A.waitall(vm=False); A("s_barrier")
    lm = []
    for t in range(6):
        for sg in range(1, 4): A(f"ds_read_b128 {vr(acc2+(sg*6+t)*4,4)}, v{va} offset:{(sg-1)*6144+t*1024}")
        lm.append(A.lmark())
    A(f"s_lshl_b32 s3, s{sI}, 2"); A(f"s_add_u32 s3, s3, s{sOWN}"); A("s_mul_i32 s3, s3, 24576"); A(f"s_mul_i32 s{sT0}, s{sJ}, 3072"); A(f"s_add_u32 s3, s3, s{sT0}"); A(f"s_add_u32 s{sT1}, s3, {WS_U}")
    for t in range(6):
        A.wait(lg=lm[t])
        d = acc2 + t*4
        for h in range(2): A(f"v_pk_add_f32 {vr(d+2*h,2)}, {vr(d+2*h,2)}, {vr(d+24+2*h,2)}")
        for h in range(2): A(f"v_pk_add_f32 {vr(d+48+2*h,2)}, {vr(d+48+2*h,2)}, {vr(d+72+2*h,2)}")
        for h in range(2): A(f"v_pk_add_f32 {vr(d+2*h,2)}, {vr(d+2*h,2)}, {vr(d+48+2*h,2)}")
        for h in range(2): A(f"v_pk_mul_f32 {vr(d+2*h,2)}, {vr(d+2*h,2)}, {vr(40+4*t+2*h,2)}")
        emit(pack(ZB+2*t, d))
        if t & 1: A(f"buffer_store_dwordx4 {vr(ZB+2*(t-1),4)}, v{vL16}, {srd(SWS)}, s{sT1} offen offset:{(t>>1)*1024} sc1")
    um = A.vmark()
    A(f"v_and_b32 v{vXH}, 7, v0"); A(f"v_lshlrev_b32 v{vXH}, 2, v{vXH}"); A(f"s_lshl_b32 s{sT3}, s{sI}, 7"); A(f"s_add_u32 s{sT3}, s{sT3}, {WS_FO}")
    f3_issue = lambda: A(f"buffer_load_dword v{vZZ}, v{vXH}, {srd(SWS)}, s{sT3} offen sc1")
    f3_check = lambda: A(f"v_cmp_ne_u32 vcc, s{sTAG}, v{vZZ}")
    f3_issue(); fm = A.vmark()
    A.wait(vm=fm); A("s_barrier")
    flag_store(lambda: (A(f"s_lshl_b32 s3, s{sI}, 7"), A(f"s_lshl_b32 s{sT0}, s{sJ}, 2"), A(f"s_add_u32 s3, s3, s{sT0}"), A(f"s_add_u32 s3, s3, {WS_FU}")))
    poll("h3", f3_issue, f3_check, 3)
    ST()
    accS, accU, XR, OF, UF, WV = 40, 56, 24, 72, 72, 160
    A(f"s_lshl_b32 s3, s{sI}, 2"); A(f"s_add_u32 s3, s3, s{sW}"); A(f"s_lshl_b32 s{sT0}, s3, 14"); A(f"s_add_u32 s{sT0}, s{sT0}, {WS_O}")
    A(f"s_mul_i32 s{sXK}, s3, 24576"); A(f"s_add_u32 s{sXK}, s{sXK}, {WS_U}")
    ofm = []
    for k in range(16):
        if k and k % 4 == 0: A(f"s_add_u32 s{sT0}, s{sT0}, 4096")
        A(f"buffer_load_dwordx4 {vr(OF+4*k,4)}, v{vL16}, {srd(SWS)}, s{sT0} offen offset:{(k&3)*1024} sc1"); ofm.append(A.vmark())
    wa = vXA
    A(f"v_bfe_u32 v{wa}, v0, 2, 2"); A(f"v_lshlrev_b32 v{wa}, 6, v{wa}"); A(f"v_and_b32 v{wa+1}, 3, v0"); A(f"v_lshl_add_u32 v{wa}, v{wa+1}, 3, v{wa}")
    A(f"v_lshl_add_u32 v{wa}, v{vG}, 9, v{wa}"); A(f"v_and_b32 v{wa+1}, 1, v{vG}"); A(f"v_lshl_add_u32 v{wa}, v{wa+1}, 5, v{wa}"); A(f"v_xor_b32 v{wa+1}, 32, v{wa}")
    for k in range(2): A(f"v_add_u32 v{wa+2+k}, {WOUTL}, v{wa+k}"); A(f"v_add_u32 v{wa+4+k}, {WOUTL+65536}, v{wa+k}")
    def wtr(dst, dt, base, Tk, tau):
        return [f"ds_read_b64_tr_b16 {vr(dst+2*e,2,dt)}, v{base+(tau&1)} offset:{Tk*4096+e*2048+(tau>>1)*256}" for e in range(2)]
    for n in range(22): emit(wdma(SWOUT, WOUTL, n))
    woutm = A.vmark()
    A(f"s_lshl_b32 s3, s{sB}, 5"); A(f"s_add_u32 s3, s3, s{sCH}"); A(f"s_lshl_b32 s{sT0}, s{sI}, 6"); A(f"s_add_u32 s3, s3, s{sT0}"); A("s_lshl_b32 s3, s3, 10"); A(f"s_lshl_b32 s{sT0}, s{sJ}, 7"); A(f"s_add_u32 s{sXK+1}, s3, s{sT0}")
    A(f"v_lshlrev_b32 v{vZ1}, 11, v{vC}"); A(f"v_lshl_add_u32 v{vZ1+1}, v{vG}, 3, v{vZ1}"); A(f"v_lshl_add_u32 v{vZ1}, v{vG}, 4, v{vZ1}")
    for tau in range(4): A(f"buffer_load_dwordx2 {vr(XR+4*tau+2,2)}, v{vZ1+1}, {srd(SX)}, s{sXK+1} offen offset:{tau*32}")
    xm = A.vmark()
    lmk = []
    for k in range(16):
        for tau in range(4): emit(wtr((k*4+tau)*4, "a", wa, k, tau))
        lmk.append(A.lmark())
        if k >= 1:
            A.wait(vm=ofm[k-1], lg=lmk[k-1])
            for tau in range(4): A(mfma(accS+4*tau, ((k-1)*4+tau)*4, OF+4*(k-1), None if k == 1 else accS+4*tau, "a", "v"))
    A.wait(vm=ofm[15], lg=lmk[15])
    for tau in range(4): A(mfma(accS+4*tau, (15*4+tau)*4, OF+60, accS+4*tau, "a", "v"))
    A(f"s_lshl_b32 s{sT3}, s{sI}, 7"); A(f"s_add_u32 s{sT3}, s{sT3}, {WS_FU}")
    f3_issue(); fm = A.vmark()
    A.wait(vm=fm); A("s_barrier")
    poll("h4", f3_issue, f3_check, 4)
    ufm = []
    for k in range(22):
        if k and k % 4 == 0: A(f"s_add_u32 s{sXK}, s{sXK}, 4096")
        A(f"buffer_load_dwordx4 {vr(UF+4*k,4)}, v{vL16}, {srd(SWS)}, s{sXK} offen offset:{(k&3)*1024} sc1"); ufm.append(A.vmark())
    for tau in range(4):
        A(f"v_lshlrev_b32 v{XR+4*tau}, 16, v{XR+4*tau+2}"); A(f"v_and_b32 v{XR+4*tau+1}, 0xffff0000, v{XR+4*tau+2}")
        A(f"v_lshlrev_b32 v{XR+4*tau+2}, 16, v{XR+4*tau+3}"); A(f"v_and_b32 v{XR+4*tau+3}, 0xffff0000, v{XR+4*tau+3}")
    lmk = []
    wf = lambda k, tau: (((k*4+tau)*4, "a") if k < 16 else (WV+((k-16)*4+tau)*4, "v"))
    def umm(k):
        A.wait(vm=ufm[k], lg=lmk[k])
        for tau in range(4): A(mfma(accU+4*tau, wf(k,tau)[0], UF+4*k, None if k == 0 else accU+4*tau, wf(k,tau)[1], "v"))
    for k in range(22):
        for tau in range(4): emit(wtr(wf(k,tau)[0], wf(k,tau)[1], wa+2 if k < 16 else wa+4, k & 15, tau))
        lmk.append(A.lmark())
        if k >= 1: umm(k-1)
    umm(21)
    e = 72
    A(f"s_mov_b32 s{sEX}, {hx(f2u(-1.4426950408889634))}")
    for k in range(8): A(f"v_pk_mul_f32 {vr(e+2*k,2)}, {vr(accU+2*k,2)}, s[{sEX}:{sEX+1}] op_sel_hi:[1,0]")
    for k in range(16): A(f"v_exp_f32 v{e+k}, v{e+k}")
    for k in range(8): A(f"v_pk_add_f32 {vr(e+2*k,2)}, {vr(e+2*k,2)}, 1.0 op_sel_hi:[1,0]")
    for k in range(16): A(f"v_rcp_f32 v{e+k}, v{e+k}")
    for k in range(8): A(f"v_pk_mul_f32 {vr(accU+2*k,2)}, {vr(accU+2*k,2)}, {vr(e+2*k,2)}")
    for k in range(8): A(f"v_pk_fma_f32 {vr(accU+2*k,2)}, {vr(accU+2*k,2)}, {vr(accS+2*k,2)}, {vr(XR+2*k,2)}")
    for tau in range(4): emit(pack(e+2*tau, accU+4*tau))
    for sw in ("v_permlane32_swap_b32", "v_permlane16_swap_b32"):
        for a in range(2):
            for k in range(2): A(f"{sw} v{e+4*a+k}, v{e+4*a+2+k}")
    for a in range(2): A(f"buffer_store_dwordx4 {vr(e+4*a,4)}, v{vZ1}, {srd(SOUT)}, s{sXK+1} offen offset:{a*64}")
    A(f"s_or_b32 s3, s2, s{sW}"); A("s_cmp_eq_u32 s3, 0"); A(f"s_cselect_b32 s3, 0, {WS_SIZE}")
    A(f"v_mov_b32 v{T+78}, s{sTAG}"); A(f"v_mov_b32 v{T+79}, 0")
    A(f"buffer_store_dword v{T+78}, v{T+79}, {srd(SWS)}, s3 offen sc1")
    if stamp:
        A("s_waitcnt vmcnt(0)"); ST()
        for k in range(16): A(f"v_mov_b32 v{100+k}, s{sST+k}")
        A("v_mov_b32 v116, s100"); A("v_mov_b32 v117, s101")
        A(f"s_lshl_b32 s3, s2, 2"); A(f"s_add_u32 s3, s3, s{sW}"); A("s_lshl_b32 s3, s3, 7"); A(f"s_add_u32 s3, s3, {WS_DBG}")
        for k in range(5): A(f"buffer_store_dwordx4 {vr(100+4*k,4)}, v{T+79}, {srd(SWS)}, s3 offen offset:{16*k}")
    A.label("L_end"); A("s_endpgm")
    for s in slowpaths: s()
    A('.section .rodata,"a"'); A(".p2align 6"); A(f".amdhsa_kernel {KN}")
    for l in (".amdhsa_next_free_vgpr 512", ".amdhsa_next_free_sgpr 102", ".amdhsa_accum_offset 256", ".amdhsa_group_segment_fixed_size 0", ".amdhsa_kernarg_size 88",
              ".amdhsa_user_sgpr_count 2", ".amdhsa_user_sgpr_kernarg_segment_ptr 1", ".amdhsa_system_sgpr_workgroup_id_x 1", ".end_amdhsa_kernel"): A(l)
    return A.text()

if __name__ == "__main__":
    out = sys.argv[1] if len(sys.argv) > 1 else "k1.s"
    open(out, "w").write(gen(stamp=("stamp" in sys.argv)))
```
